```python
import torch

def _softmax(x, axis=-1):
    return torch.softmax(x, dim=axis)
def _gelu(x):
    return torch.nn.functional.gelu(x, approximate="tanh")
def _silu(x):
    return torch.nn.functional.silu(x)
def _sigmoid(x):
    return torch.sigmoid(x)
def _layernorm(x, axis=-1, eps=1e-5):
    m = x.mean(dim=axis, keepdim=True)
    v = x.var(dim=axis, keepdim=True, unbiased=False)
    return (x - m) / torch.sqrt(v + eps)
def _scatter_add(tgt, idx, src, axis=0):
    return tgt.clone().index_add_(axis, idx, src)
def _segment_sum(src, seg, n):
    out = torch.zeros((n,) + src.shape[1:], dtype=src.dtype)
    return out.index_add_(0, seg, src)
def _pad(x, pw):
    flat = tuple(v for pair in reversed(pw) for v in pair)
    return torch.nn.functional.pad(x, flat)

kernel_name = 'concat_heads__sliding_local_dilated__spectral_fnet__prompt'

def setup_inputs():

    _w = (lambda a: (lambda t: t.to(torch.bfloat16) if t.is_floating_point() else t)(torch.as_tensor(a)))
    def _A_setup():
        B, S, D = 1, 2048, 640
        return {
            "x": _w((lambda *s: torch.randn(*s, dtype=torch.bfloat16) * 0.2)(B, S, D)),
            "wqkv": _w((lambda *s: torch.randn(*s, dtype=torch.bfloat16) * 0.8)(D, 3 * D)),
            "wo": _w((lambda *s: torch.randn(*s, dtype=torch.bfloat16) * 0.2)(D, D)),
        }
    _A_in = _A_setup()

    def _B_setup():
        B, S, D = 1, 2048, 640
        ns = torch.arange(S)[:, None] * torch.arange(S)[None, :]
        nd = torch.arange(D)[:, None] * torch.arange(D)[None, :]
        Ws_re = torch.cos(-2.0 * torch.pi * ns / S).to(float)
        Ws_im = torch.sin(-2.0 * torch.pi * ns / S).to(float)
        Wd_re = torch.cos(-2.0 * torch.pi * nd / D).to(float)
        Wd_im = torch.sin(-2.0 * torch.pi * nd / D).to(float)
        return {
            "x": _w((lambda *s: torch.randn(*s, dtype=torch.bfloat16) * 0.05)(B, S, D)),
            "dft_seq_re": _w(Ws_re),
            "dft_seq_im": _w(Ws_im),
            "dft_hid_re": _w(Wd_re),
            "dft_hid_im": _w(Wd_im),
        }
    _B_in = _B_setup()

    return {
        "A_x": _A_in["x"],
        "A_wqkv": _A_in["wqkv"],
        "A_wo": _A_in["wo"],
        "B_x": _B_in["x"],
        "B_dft_seq_re": _B_in["dft_seq_re"],
        "B_dft_seq_im": _B_in["dft_seq_im"],
        "B_dft_hid_re": _B_in["dft_hid_re"],
        "B_dft_hid_im": _B_in["dft_hid_im"],
    }

def reference(A_x, A_wqkv, A_wo, B_x, B_dft_seq_re, B_dft_seq_im, B_dft_hid_re, B_dft_hid_im):
    def _A_ref(x, wqkv, wo):
        B, S, D = x.shape
        H = 32; Dh = D // H
        W, dil = 8, 2
        qkv = (lambda x, *d: x.permute(*d))((x @ wqkv).reshape(B, S, 3, H, Dh), 2, 0, 3, 1, 4)
        q, k, v = qkv[0], qkv[1], qkv[2]
        scale = Dh ** -0.5
        pos = torch.arange(S)
        off = torch.arange(W) * dil
        idx = pos[:, None] - off[None, :]
        mask = idx >= 0
        idx_c = torch.where(mask, idx, 0).reshape(-1)
        kg = k[:, :, idx_c, :].reshape(B, H, S, W, Dh)
        vg = v[:, :, idx_c, :].reshape(B, H, S, W, Dh)
        logits = torch.einsum("bhsd,bhswd->bhsw", q, kg) * scale
        logits = torch.where(mask[None, None, :, :], logits, -1e9)
        attn = _softmax(logits, axis=-1)
        o = torch.einsum("bhsw,bhswd->bhsd", attn, vg)
        return (lambda x, *d: x.permute(*d))(o, 0, 2, 1, 3).reshape(B, S, D) @ wo

    def _B_ref(x, dft_seq_re, dft_seq_im, dft_hid_re, dft_hid_im):
        a = torch.einsum("bsd,ed->bse", x, dft_hid_re)
        b = torch.einsum("bsd,ed->bse", x, dft_hid_im)
        y = torch.einsum("ts,bse->bte", dft_seq_re, a) - torch.einsum("ts,bse->bte", dft_seq_im, b)
        return y

    a = _A_ref(A_x, A_wqkv, A_wo)
    b = _B_ref(B_x, B_dft_seq_re, B_dft_seq_im, B_dft_hid_re, B_dft_hid_im)
    return torch.concatenate([a, b], axis=-1)
```

```python
import re
KNAME = "concat_heads__sliding_local_dilated__spectral_fnet__prompt_kernel"

def regs_of(tok):
    tok = tok.strip()
    tok = tok.lstrip("-").replace("|", "")
    m = re.fullmatch(r"abs\((.*)\)", tok)
    if m: tok = m.group(1)
    m = re.fullmatch(r"([vsa])(\d+)", tok)
    if m: return {(m.group(1), int(m.group(2)))}
    m = re.fullmatch(r"([vsa])\[(\d+):(\d+)\]", tok)
    if m: return {(m.group(1), i) for i in range(int(m.group(2)), int(m.group(3)) + 1)}
    if tok == "vcc": return {("s", "vcc")}
    if tok == "m0": return {("s", "m0")}
    if tok == "exec": return {("s", "exec")}
    return set()

TRANS = ("v_exp_", "v_log_", "v_rcp_", "v_rsq_", "v_sqrt_", "v_sin_", "v_cos_")

def parse(line):
    s = line.split(";")[0].strip()
    if not s: return None
    if s.endswith(":"): return dict(kind="label", name=s[:-1])
    parts = s.split(None, 1)
    mn = parts[0]
    ops = [o.strip() for o in parts[1].split(",")] if len(parts) > 1 else []
    mods = ""
    if ops:
        sp = ops[-1].split(None, 1)
        ops[-1] = sp[0]
        mods = sp[1] if len(sp) > 1 else ""
    R = [regs_of(o) for o in ops]
    d = dict(mn=mn, ops=ops, mods=mods, w=set(), r=set(), kind="other")
    U = lambda l: set().union(*l) if l else set()
    if mn.startswith("v_mfma"):
        d.update(kind="mfma", w=R[0], ab=R[1] | R[2], c=R[3], r=R[1] | R[2] | R[3])
    elif mn.startswith("v_permlane"):
        d.update(kind="valu", w=R[0] | R[1], r=R[0] | R[1], perm=True)
    elif mn.startswith("v_readfirstlane") or mn.startswith("v_readlane"):
        d.update(kind="valu", w=R[0], r=U(R[1:]), rdl=True)
    elif mn.startswith("v_"):
        w = set(R[0]); r = U(R[1:])
        if "_co_" in mn and len(ops) >= 4:
            w |= R[1]; r = U(R[2:])
        if mn.startswith("v_cndmask") and len(ops) == 3: r |= {("s", "vcc")}
        if mn.startswith(("v_fmac", "v_dot2c")): r |= R[0]
        d.update(kind="valu", w=w, r=r, trans=mn.startswith(TRANS), dpp=("dpp" in mn or "row_" in mods or "quad_perm" in mods))
        if d["dpp"]: d["r"] |= R[0]
    elif mn.startswith(("buffer_load", "global_load")):
        if "lds" in mods.split() or "_lds_" in mn:
            d.update(kind="vmem", r=U(R) | {("s", "m0")}, dma=True)
        else:
            d.update(kind="vmem", w=R[0], r=U(R[1:]))
    elif mn.startswith(("buffer_store", "global_store", "buffer_atomic", "global_atomic")):
        d.update(kind="vmem", r=U(R), data=R[0] if mn.startswith("buffer") else R[1], wide=("x3" in mn or "x4" in mn))
    elif mn.startswith("ds_read") or mn.startswith("ds_bpermute"):
        d.update(kind="ds", w=R[0], r=U(R[1:]))
    elif mn.startswith("ds_"):
        d.update(kind="ds", r=U(R))
    elif mn == "s_nop":
        d.update(kind="nop", n=int(ops[0], 0) + 1)
    elif mn.startswith("s_cbranch") or mn == "s_branch":
        d.update(kind="branch", target=ops[0], uncond=(mn == "s_branch"))
    elif mn == "s_endpgm":
        d.update(kind="end")
    elif mn.startswith("s_"):
        if mn.startswith(("s_cmp", "s_waitcnt", "s_barrier", "s_setprio", "s_sleep", "s_bitcmp")):
            d.update(kind="salu", r=U(R))
        else:
            d.update(kind="salu", w=R[0] if R else set(), r=U(R[1:]))
            if "saveexec" in mn: d["w"] = d["w"] | {("s", "exec")}
    return d

def need_ws(p, c):
    n = 0
    vw = lambda x: {r for r in x if r[0] in "va"}
    sw = lambda x: {r for r in x if r[0] == "s"}
    if p["kind"] == "valu":
        pv = vw(p["w"]); ps = sw(p["w"])
        if c["kind"] == "mfma" and pv & c["r"]: n = max(n, 2)
        if c["kind"] == "valu":
            if (c.get("perm") or c.get("dpp")) and pv & c["r"]: n = max(n, 2)
            if c.get("rdl") and pv & c["r"]: n = max(n, 1)
            if p.get("trans") and not c.get("trans") and pv & c["r"]: n = max(n, 1)
            if ps & c["r"]: n = max(n, 4 if c.get("rdl") else 2)
        if c["kind"] == "vmem" and ps & c["r"]: n = max(n, 5)
    if p["kind"] == "mfma":
        D = p["w"]
        if c["kind"] == "mfma":
            if D & c["ab"]: n = max(n, 8)
            if D & c["c"] and c["c"] != D: n = max(n, 6)
            if D & c["w"] and c["c"] != D: n = max(n, 8)
        if c["kind"] in ("valu", "vmem", "ds") and D & (c["r"] | c["w"]): n = max(n, 8)
        if c["kind"] == "valu" and p["c"] & c["w"]: n = max(n, 3)
    if p["kind"] == "salu" and ("s", "m0") in p["w"] and c.get("dma"): n = max(n, 1)
    if p["kind"] == "vmem" and p.get("wide") and p.get("data", set()) & c.get("w", set()):
        n = max(n, 2 if c["kind"] == "valu" else 1)
    return n

def fix_hazards(lines):
    out = []; ev = []; pending = {}; added = 0
    for line in lines:
        d = parse(line)
        if d is None:
            out.append(line); continue
        if d["kind"] == "label":
            for e in pending.pop(d["name"], []): ev.append(e)
            out.append(line); continue
        need = 0
        for age, p in ev:
            n = need_ws(p, d)
            if n > age: need = max(need, n - age)
        if need:
            out.append(f"    s_nop {need-1}"); added += need
            ev = [(a + need, p) for a, p in ev]
        out.append(line)
        step = d["n"] if d["kind"] == "nop" else 1
        ev = [(a + step, p) for a, p in ev if a + step < 12]
        if d["kind"] in ("valu", "mfma", "salu", "vmem"): ev.append((0, d))
        if d["kind"] == "branch":
            pending.setdefault(d["target"], []).extend(ev)
            if d["uncond"]: ev = []
        if d["kind"] == "end": ev = []
    return out, added

class Asm:
    def __init__(self):
        self.l = []
        self.nlab = 0
    def __call__(self, s=""):
        for line in s.split("\n"):
            t = line.strip()
            if not t: continue
            self.l.append(t if t.endswith(":") else "    " + t)
    def label(self, base="L"):
        self.nlab += 1
        return f"{base}_{self.nlab}"
    def text(self, fix=False):
        l = self.l
        if fix:
            l, n = fix_hazards(l)
            self.nops_added = n
        return "\n".join(l) + "\n"

def header(grid, block, lds, kname=KNAME, pre=""):
    return f"""{pre}; @launch grid=({grid},1,1) block=({block},1,1) lds={lds}
.amdgcn_target "amdgcn-amd-amdhsa--gfx950"
.text
.globl {kname}
.p2align 8
.type {kname},@function
{kname}:
"""
def footer(nv=512, acc=256, ns=102, kname=KNAME):
    return f"""
.section .rodata,"a"
.p2align 6
.amdhsa_kernel {kname}
  .amdhsa_next_free_vgpr {nv}
  .amdhsa_next_free_sgpr {ns}
  .amdhsa_accum_offset {acc}
  .amdhsa_group_segment_fixed_size 0
  .amdhsa_kernarg_size 88
  .amdhsa_user_sgpr_count 2
  .amdhsa_user_sgpr_kernarg_segment_ptr 1
  .amdhsa_system_sgpr_workgroup_id_x 1
.end_amdhsa_kernel
"""
def srd(a, d, lo, nbytes):
    a(f"s_mov_b32 s{d}, s{lo}")
    a(f"s_and_b32 s{d+1}, s{lo+1}, 0xffff")
    a(f"s_mov_b32 s{d+2}, {hex(nbytes)}")
    a(f"s_mov_b32 s{d+3}, 0x20000")
```

```python
import sys, struct
from asmlib import *

out = sys.argv[1]; opts = sys.argv[2:]
STAMP = "stamp" in opts
def opt(name, default):
    for o in opts:
        if o.startswith(name + "="): return int(o.split("=")[1], 0)
    return default

a = Asm()
f2h = lambda x: hex(struct.unpack("<I", struct.pack("<f", x))[0])
vr = lambda b, n=4: f"v[{b}:{b+n-1}]"

O_OFF, U_OFF, FLAG_O = 0, 0x300000, 0x700000
FLAG_U = FLAG_O + 768 * 128
STAMP_OFF = 0xC800000
WSLOT = {2: 0, 3: 16384, 0: 106496, 1: 122880}
XSLOT = {2: 32768, 3: 57344, 0: 81920, 1: 139264}
HI = 106496
EXCH = 106496
UB = 106496
B2L = 102400
POLL_MAX = 1 << 17
SRD_X, SRD_W, SRD_WO, SRD_BX, SRD_OUT, SRD_DBG, SRD_WS = 20, 24, 28, 32, 36, 40, 44
sWAVE, sW4, sXCD, sI, sTG, sHP, sPAR, sTOK0, sSEG, sS2 = range(48, 58)
sT = list(range(60, 70))
sSTAMP = 72
srdr = lambda s: f"s[{s}:{s+3}]"
nstamp = [0]
def stamp(i):
    if STAMP: a(f"s_memtime s[{sSTAMP+2*i}:{sSTAMP+2*i+1}]")
def finish():
    if STAMP:
        a("s_branch L_stampout")
    else:
        a("s_endpgm")

class LdsQ:
    def __init__(self): self.q = []; self.defer = []
    def issue(self, instr, tag): a(instr); self.q.append(tag)
    def put(self, instr, tag): self.defer.append((instr, tag))
    def pop(self, k=1):
        for _ in range(min(k, len(self.defer))):
            i, t = self.defer.pop(0); self.issue(i, t)
    def flush(self): self.pop(len(self.defer))
    def need(self, tags):
        while any(t in tags for _, t in self.defer): self.pop()
        idx = max([i for i, t in enumerate(self.q) if t in tags], default=-1)
        if idx < 0: return
        n = min(len(self.q) - 1 - idx, 15)
        a(f"s_waitcnt lgkmcnt({n})")
        del self.q[:len(self.q) - n]
    def drain(self):
        self.flush(); a("s_waitcnt lgkmcnt(0)"); self.q = []

def check_dbg(vreg, vz):
    l0, l1 = a.label("L_dbg"), a.label("L_dbgok")
    a(f"s_mov_b32 s{sT[9]}, 0")
    a(f"{l0}:")
    a(f"v_cmp_eq_u32 vcc, 0, v{vreg}")
    a(f"s_cbranch_vccz {l1}")
    a(f"s_add_u32 s{sT[9]}, s{sT[9]}, 1")
    a(f"s_cmp_gt_u32 s{sT[9]}, {POLL_MAX}")
    a(f"s_cbranch_scc1 {l1}")
    a(f"buffer_load_dword v{vreg}, v{vz}, {srdr(SRD_DBG)}, 0 offen sc1")
    a("s_waitcnt vmcnt(0)")
    a(f"s_branch {l0}")
    a(f"{l1}:")

def poll_flags(vaddr, soff, vtmp):
    l0, l1 = a.label("L_poll"), a.label("L_pollok")
    a(f"s_mov_b32 s{sT[9]}, 0")
    a(f"{l0}:")
    a(f"buffer_load_dword v{vtmp}, v{vaddr}, {srdr(SRD_WS)}, s{soff} offen sc1")
    a(f"s_add_u32 s{sT[9]}, s{sT[9]}, 1")
    a(f"s_cmp_gt_u32 s{sT[9]}, {POLL_MAX}")
    a(f"s_cbranch_scc1 {l1}")
    a("s_waitcnt vmcnt(0)")
    a(f"v_cmp_ne_u32 vcc, 1, v{vtmp}")
    a(f"s_cbranch_vccnz {l0}")
    a(f"{l1}:")
    a("s_waitcnt vmcnt(0)")

if STAMP:
    a(f"s_memrealtime s[{sSTAMP+26}:{sSTAMP+27}]")
stamp(0)
a(f"""s_cmp_ge_u32 s2, 256
s_cbranch_scc1 L_end
s_load_dwordx8 s[4:11], s[0:1], 0
s_load_dwordx4 s[12:15], s[0:1], 64
s_load_dwordx2 s[16:17], s[0:1], 80
v_lshrrev_b32 v1, 6, v0
v_and_b32 v0, 63, v0
s_and_b32 s{sXCD}, s2, 7
s_lshr_b32 s{sI}, s2, 3
v_readfirstlane_b32 s{sWAVE}, v1
s_and_b32 s{sW4}, s{sWAVE}, 3
s_cmp_ge_u32 s{sI}, 24
s_cbranch_scc1 L_B""")
a(f"""s_mul_i32 s60, s{sI}, 86
s_lshr_b32 s60, s60, 8
s_mul_i32 s61, s60, 3
s_sub_u32 s61, s{sI}, s61
s_lshr_b32 s62, s{sXCD}, 1
s_mul_i32 s62, s62, 3
s_add_u32 s{sTG}, s62, s61
s_and_b32 s62, s{sXCD}, 1
s_lshl_b32 s62, s62, 3
s_add_u32 s{sHP}, s62, s60
s_and_b32 s{sPAR}, s{sTG}, 1
s_lshr_b32 s{sSEG}, s{sTG}, 1
s_mul_i32 s60, s{sSEG}, 352
s_sub_u32 s60, s60, 32
s_add_u32 s{sTOK0}, s60, s{sPAR}
s_cmp_ge_u32 s{sWAVE}, 4
s_cbranch_scc0 L_Acomp""")

def all_srds(skip=()):
    for s, lo, n in ((SRD_X, 4, 2048*640*2), (SRD_W, 6, 640*1920*2), (SRD_WO, 8, 640*640*2), (SRD_BX, 10, 2048*640*2),
                     (SRD_OUT, 12, 2048*1280*2), (SRD_DBG, 14, 256), (SRD_WS, 16, 268435456)):
        if s not in skip: srd(a, s, lo, n)

vWO = list(range(20, 25))
sCG, sTGRP = 58, 59
def wo_setup():
    a(f"""s_lshr_b32 s{sCG}, s{sI}, 2
    s_and_b32 s60, s{sI}, 3
    s_lshl_b32 s{sTGRP}, s{sXCD}, 2
    s_add_u32 s{sTGRP}, s{sTGRP}, s60
    s_lshl_b32 s60, s{sW4}, 6
    s_mul_i32 s61, s{sCG}, 160
    s_movk_i32 s62, 1280""")
    for b in range(5):
        a(f"""v_add_u32 v1, s60, v0
        v_add_u32 v1, {64*b}, v1
        v_mul_u32_u24 v2, 6554, v1
        v_lshrrev_b32 v2, 16, v2
        v_mul_u32_u24 v3, 10, v2
        v_sub_u32 v3, v1, v3
        v_mul_u32_u24 v2, s62, v2
        v_lshlrev_b32 v3, 4, v3
        v_add3_u32 v{vWO[b]}, v2, v3, s61""")
def wo_dma(n0s):
    r = []
    for n0 in n0s:
        r.append(f"s_add_u32 m0, s{sM0WO}, {1024*n0}\ns_mov_b32 s63, {40960*(n0//5)}\nbuffer_load_dwordx4 v{vWO[n0%5]}, {srdr(SRD_WO)}, s63 offen lds")
    return r
sM0X, sM0W, sM0WO = 64, 65, 66

vX = list(range(10, 16)); vW = list(range(16, 20))
a(f"""v_lshrrev_b32 v3, 3, v0
v_and_b32 v4, 7, v0
v_lshrrev_b32 v5, 4, v0
s_mul_i32 s60, s{sW4}, 48
s_movk_i32 s62, 1280
v_bfrev_b32 v9, 1""")
for n in range(6):
    a(f"""v_xor_b32 v6, {4*(n&1)}, v5
    v_xor_b32 v6, v6, v4
    s_add_u32 s61, s60, {8*n}
    v_add_u32 v7, s61, v3
    v_lshl_add_u32 v8, v7, 1, s{sTOK0}
    v_mul_lo_u32 v8, v8, s62
    v_lshl_add_u32 v{vX[n]}, v6, 4, v8""")
    if n < 2:
        a(f"""v_cmp_gt_u32 vcc, 9, v7
        v_cndmask_b32 v{vX[n]}, v{vX[n]}, v9, vcc""")
a(f"""v_and_b32 v4, 15, v0
s_lshl_b32 s60, s{sW4}, 4
s_mul_i32 s62, s{sHP}, 80""")
for n in range(4):
    if n % 2 == 0:
        a(f"""v_lshlrev_b32 v6, 1, v5
        v_sub_u32 v6, v4, v6
        v_add_u32 v6, {16 - 8*(n>>1)}, v6
        v_and_b32 v6, 15, v6
        v_min_u32 v6, 14, v6
        v_mul_u32_u24 v7, 52, v6
        v_lshrrev_b32 v7, 8, v7
        v_mul_u32_u24 v8, 1200, v7
        v_lshl_add_u32 v6, v6, 4, v8
        s_add_u32 s61, s60, {4*n}
        v_add_u32 v7, s61, v5
        v_mul_u32_u24 v7, 3840, v7
        v_add3_u32 v{vW[n]}, v6, v7, s62""")
    else:
        a(f"v_add_u32 v{vW[n]}, {4*3840}, v{vW[n-1]}")
a(f"""s_mul_i32 s{sM0X}, s{sW4}, 6144
s_lshl_b32 s{sM0W}, s{sW4}, 12
s_lshl_b32 s{sM0WO}, s{sW4}, 10
s_waitcnt lgkmcnt(0)""")
srd(a, SRD_W, 6, 640*1920*2)
srd(a, SRD_X, 4, 2048*640*2)
def dma(st):
    slot = st % 4; r = []
    for n in range(4):
        r.append(f"s_add_u32 m0, s{sM0W}, {WSLOT[slot] + n*1024}\ns_mov_b32 s63, {st*64*3840}\nbuffer_load_dwordx4 v{vW[n]}, {srdr(SRD_W)}, s63 offen lds")
    for n in range(6):
        r.append(f"s_add_u32 m0, s{sM0X}, {XSLOT[slot] + n*1024}\ns_movk_i32 s63, {st*128}\nbuffer_load_dwordx4 v{vX[n]}, {srdr(SRD_X)}, s63 offen lds")
    return r
stamp(1)
for d in dma(0) + dma(1): a(d)
all_srds(skip=(SRD_X, SRD_W))
wo_setup()
a("s_waitcnt vmcnt(10)\ns_barrier")
stamp(2)
for d in dma(2): a(d)
a("s_waitcnt vmcnt(10)\ns_barrier")
for d in dma(3) + dma(4): a(d)
WO_N0 = {6: [0, 4, 8, 12, 32, 36, 40, 44, 48, 52], 7: [16, 20, 24, 28, 56, 60, 64, 68, 72, 76], 8: [80, 84, 88, 92, 96]}
for st in range(1, 9):
    a("s_waitcnt vmcnt(20)\ns_barrier")
    if st + 4 < 10:
        for d in dma(st + 4): a(d)
    elif st in WO_N0:
        for d in wo_dma(WO_N0[st]): a(d)
stamp(3)
a(f"""v_mov_b32 v1, 0
buffer_load_dword v2, v1, {srdr(SRD_DBG)}, 0 offen sc1
s_barrier
s_waitcnt vmcnt(0)""")
check_dbg(2, 1)
a("s_barrier")
stamp(4)
a("s_branch L_A2")

a("L_Acomp:")
ACC = 32
acc = lambda f, t: ACC + 12*f + 4*t
vWA = list(range(10, 18)); vWB = list(range(18, 26)); vXA = [26, 27]; vXB = [28, 29]
WF = 128; XF = 160
OFFS = [(0, 8), (40, 8), (80, 8), (120, 8), (32, 40), (160, 8), (200, 8), None]
sCLR = 67
a(f"""s_or_b32 s{sCLR}, s2, s{sWAVE}
v_lshrrev_b32 v3, 4, v0
v_bfe_u32 v4, v0, 2, 2
v_and_b32 v5, 3, v0
v_and_b32 v6, 1, v3
v_lshl_add_u32 v6, v6, 2, v4
v_lshlrev_b32 v6, 5, v6
v_lshl_add_u32 v7, v3, 3, v4
v_lshlrev_b32 v7, 8, v7""")
for f in range(8):
    if OFFS[f]:
        o, s = OFFS[f]
        a(f"v_mad_u32_u24 v8, v5, {s}, v6\nv_add_u32 v8, {o}, v8")
    else:
        a("""v_mul_u32_u24 v8, 40, v5
        v_lshlrev_b32 v9, 3, v5
        v_cmp_gt_u32 vcc, 2, v5
        v_cndmask_b32 v8, v9, v8, vcc
        v_add_u32 v8, v8, v6
        v_add_u32 v8, 192, v8""")
    a(f"v_and_b32 v8, 255, v8\nv_add_u32 v{vWA[f]}, v7, v8\nv_add_u32 v{vWB[f]}, {HI}, v{vWA[f]}")
a(f"""v_and_b32 v4, 15, v0
v_lshrrev_b32 v5, 1, v4
v_xor_b32 v5, v5, v3
v_lshlrev_b32 v5, 4, v5
v_lshl_add_u32 v5, v4, 7, v5
s_mul_i32 s60, s{sW4}, 6144
s_add_u32 s60, s60, {XSLOT[2]}
v_add_u32 v{vXA[0]}, s60, v5
v_xor_b32 v{vXA[1]}, 64, v{vXA[0]}
v_add_u32 v{vXB[0]}, {HI}, v{vXA[0]}
v_add_u32 v{vXB[1]}, {HI}, v{vXA[1]}
s_waitcnt lgkmcnt(0)""")
srd(a, SRD_DBG, 14, 256)
srd(a, SRD_WS, 16, 268435456)
a(f"""v_mov_b32 v30, 0
s_cmp_lg_u32 s{sCLR}, 0
s_cbranch_scc1 L_noclr
v_lshlrev_b32 v8, 7, v0""")
for n in range(13):
    a(f"s_mov_b32 s60, {FLAG_O + n*8192}\nbuffer_store_dword v30, v8, {srdr(SRD_WS)}, s60 offen sc1")
a("L_noclr:")
M0R, M1R, M0S, PM = 184, 188, 192, 196
a(f"""v_and_b32 v4, 15, v0
v_lshlrev_b32 v5, 2, v3
v_sub_u32 v5, v5, v4
v_mov_b32 v6, {f2h(-1e30)}
s_lshl_b32 s60, s{sSEG}, 2
s_or_b32 s60, s60, s{sW4}
s_cmp_eq_u32 s60, 0
s_cselect_b64 s[60:61], -1, 0""")
for r in range(4):
    a(f"""v_add_u32 v7, {r}, v5
    v_cmp_lt_i32 vcc, 8, v7
    v_cndmask_b32 v{M0R+r}, v6, v30, vcc
    v_add_u32 v7, 7, v7
    v_cmp_gt_u32 vcc, 8, v7
    v_cndmask_b32 v{M1R+r}, v6, v30, vcc
    v_cndmask_b32 v{M0S+r}, v{M0R+r}, v6, s[60:61]""")
for k in range(2):
    a(f"""v_cmp_eq_u32 vcc, 0, v{M0R+2*k}
    v_mov_b32 v7, 0xffff
    v_cndmask_b32 v7, v30, v7, vcc
    v_cmp_eq_u32 vcc, 0, v{M0R+2*k+1}
    v_mov_b32 v8, 0xffff0000
    v_cndmask_b32 v8, v30, v8, vcc
    v_or_b32 v{PM+k}, v7, v8""")
vOM, vOX = 198, 199
a(f"""v_lshlrev_b32 v{vOM}, 4, v0
s_and_b32 s60, s{sHP}, 1
v_xor_b32 v7, s60, v3
v_lshlrev_b32 v7, 3, v7
v_lshl_add_u32 v{vOX}, v4, 4, v7""")
stamp(1)
Q = LdsQ()
def rdW(st, ks, f):
    slot = st % 4
    v = vWA[f] if slot >= 2 else vWB[f]
    o = (slot & 1) * 16384 + ks * 8192
    return [f"ds_read_b64_tr_b16 {vr(WF+4*f, 2)}, v{v} offset:{o}", f"ds_read_b64_tr_b16 {vr(WF+4*f+2, 2)}, v{v} offset:{o+1024}"]
def rdX(st, ks, t):
    slot = st % 4
    v, o = (vXB[ks], 0) if slot == 1 else (vXA[ks], XSLOT[slot] - XSLOT[2])
    return [f"ds_read_b128 {vr(XF+12*ks+4*t)}, v{v} offset:{o + t*2048}"]
a("s_barrier")
stamp(2)
for t in range(3):
    for i in rdX(0, 0, t): Q.issue(i, ("x", 0, t))
for f in range(8):
    for i in rdW(0, 0, f): Q.issue(i, ("w", 0, f))
for n in range(20):
    st, ks = n >> 1, n & 1
    nn = n + 1; nst, nks = nn >> 1, nn & 1
    pend = []
    for f in range(8):
        Q.need({("w", n, f)} | {("x", n, t) for t in range(3)})
        nxt = []
        if nn < 20:
            nxt = [(i, ("w", nn, f)) for i in rdW(nst, nks, f)]
            if f in (3, 4, 5): nxt += [(i, ("x", nn, f - 3)) for i in rdX(nst, nks, f - 3)]
        for t in range(3):
            c = "0" if n == 0 else vr(acc(f, t))
            w, x = vr(WF + 4*f), vr(XF + 12*ks + 4*t)
            if f < 5: a(f"v_mfma_f32_16x16x32_bf16 {vr(acc(f,t))}, {w}, {x}, {c}")
            else:     a(f"v_mfma_f32_16x16x32_bf16 {vr(acc(f,t))}, {x}, {w}, {c}")
            Q.pop(1 if len(Q.defer) <= 3 - t else 2)
        if ks == 1 and f <= 2:
            pend += nxt
            if f == 2 and nn < 20:
                Q.drain()
                a("s_barrier")
                for i, tg in pend: Q.put(i, tg)
                if st == 1:
                    a(f"""s_cmp_lg_u32 s{sCLR}, 0
                    s_cbranch_scc1 L_noclr2
                    v_mov_b32 v31, 1
                    s_waitcnt vmcnt(0)
                    buffer_store_dword v31, v30, {srdr(SRD_DBG)}, 0 offen sc1
                    L_noclr2:""")
                if st == 7:
                    a(f"buffer_load_dword v9, v30, {srdr(SRD_DBG)}, 0 offen sc1")
        else:
            for i, tg in nxt: Q.put(i, tg)
stamp(3)
KO = 128
QO = 152
VP = 200
ko = lambda t: KO + 6*(t + 1)
qo = lambda h, t: QO + 12*h + 4*t
vp = lambda ty, t: VP + 8*ty + 2*(t + 1)
a("s_mov_b64 s[60:61], 0xffff\ns_mov_b32 s62, 0xffff0000\ns_mov_b32 s63, 0")
def cvt(d, s): a(f"v_cvt_pk_bf16_f32 v{d}, v{s}, v{s+1}")
def pack_kv(t):
    cvt(ko(t), acc(2, t)); cvt(ko(t)+1, acc(2, t)+2)
    cvt(ko(t)+4, acc(3, t)); cvt(ko(t)+5, acc(3, t)+2)
    cvt(2+2*t, acc(4, t)); cvt(3+2*t, acc(4, t)+2)
    a(f"v_mov_b32 v{ko(t)+2}, 0\nv_mov_b32 v{ko(t)+3}, 0")
    for ty in range(3):
        cvt(vp(ty, t), acc(5+ty, t)); cvt(vp(ty, t)+1, acc(5+ty, t)+2)
    a(f"v_permlane32_swap_b32 v{2+2*t}, v{ko(t)+2}\nv_permlane32_swap_b32 v{3+2*t}, v{ko(t)+3}")
def pack_q(t):
    cvt(qo(0, t), acc(0, t)); cvt(qo(0, t)+1, acc(0, t)+2)
    cvt(qo(1, t)+2, acc(1, t)); cvt(qo(1, t)+3, acc(1, t)+2)
    a(f"""v_cndmask_b32 v{qo(0,t)+2}, v30, v{2+2*t}, s[60:61]
    v_cndmask_b32 v{qo(0,t)+3}, v30, v{3+2*t}, s[60:61]
    v_cndmask_b32 v{qo(1,t)}, v30, v{2+2*t}, s[62:63]
    v_cndmask_b32 v{qo(1,t)+1}, v30, v{3+2*t}, s[62:63]""")
a(f"""s_mul_i32 s64, s{sW4}, 3072
s_add_u32 s65, s64, {EXCH}
v_lshl_add_u32 v8, v0, 3, s65
s_sub_u32 s64, s64, 3072
s_max_i32 s64, s64, 0
s_add_u32 s64, s64, {EXCH}
v_lshl_add_u32 v1, v0, 3, s64""")
pack_kv(2)
for k in range(3): a(f"ds_write_b64 v8, {vr(ko(2)+2*k, 2)} offset:{512*k}")
for ty in range(3): a(f"ds_write_b64 v8, {vr(vp(ty, 2), 2)} offset:{1536 + 512*ty}")
pack_kv(1); pack_kv(0)
a("s_waitcnt lgkmcnt(0)\ns_barrier")
for k in range(3): a(f"ds_read_b64 {vr(ko(-1)+2*k, 2)}, v1 offset:{512*k}")
for ty in range(3): a(f"ds_read_b64 {vr(vp(ty, -1), 2)}, v1 offset:{1536 + 512*ty}")
for t in (2, 1, 0): pack_q(t)
combos = [(h, t) for t in (2, 1, 0) for h in (0, 1)]
SB = lambda i: ACC + 16*i
kop = lambda h, t: vr(ko(t) + 2*h)
for i, (h, t) in enumerate(combos):
    if i == 4: a("s_waitcnt lgkmcnt(0)")
    a(f"v_mfma_f32_16x16x32_bf16 {vr(SB(i)+4)}, {kop(h, t)}, {vr(qo(h, t))}, {vr(M1R)}")
    a(f"v_mfma_f32_16x16x32_bf16 {vr(SB(i))}, {kop(h, t-1)}, {vr(qo(h, t))}, {vr(M0S if t == 1 else M0R)}")
CS = 20 ** -0.5 * 1.4426950408889634
a(f"s_mov_b32 s64, {f2h(CS)}")
def each(fn):
    for i in range(6): fn(SB(i), i)
def xlane(op, reg, tmp):
    each(lambda b, i: a(f"v_mov_b32 v{b+tmp}, v{b+reg}"))
    each(lambda b, i: a(f"v_permlane32_swap_b32 v{b+reg}, v{b+tmp}"))
    each(lambda b, i: a(f"{op} v{b+reg}, v{b+reg}, v{b+tmp}"))
    each(lambda b, i: a(f"v_mov_b32 v{b+tmp}, v{b+reg}"))
    each(lambda b, i: a(f"v_permlane16_swap_b32 v{b+reg}, v{b+tmp}"))
    each(lambda b, i: a(f"{op} v{b+reg}, v{b+reg}, v{b+tmp}"))
each(lambda b, i: [a(f"v_max_f32 v{b+r}, v{b+r}, v{b+4+r}") for r in range(4)])
each(lambda b, i: a(f"v_max3_f32 v{b+8}, v{b}, v{b+1}, v{b+2}"))
each(lambda b, i: a(f"v_max_f32 v{b+8}, v{b+8}, v{b+3}"))
xlane("v_max_f32", 8, 9)
each(lambda b, i: a(f"v_mul_f32 v{b+8}, s64, v{b+8}"))
each(lambda b, i: [a(f"v_fma_f32 v{b+r}, v{b+r}, s64, -v{b+8}") for r in range(4)])
each(lambda b, i: [a(f"v_exp_f32 v{b+r}, v{b+r}") for r in range(4)])
each(lambda b, i: a(f"v_add_f32 v{b+8}, v{b}, v{b+1}\nv_add_f32 v{b+9}, v{b+2}, v{b+3}"))
each(lambda b, i: a(f"v_add_f32 v{b+8}, v{b+8}, v{b+9}"))
xlane("v_add_f32", 8, 9)
each(lambda b, i: a(f"v_rcp_f32 v{b+8}, v{b+8}"))
each(lambda b, i: [a(f"v_mul_f32 v{b+r}, v{b+r}, v{b+8}") for r in range(4)])
each(lambda b, i: a(f"v_cvt_pk_bf16_f32 v{b+14}, v{b}, v{b+1}\nv_cvt_pk_bf16_f32 v{b+15}, v{b+2}, v{b+3}"))
each(lambda b, i: a(f"v_and_b32 v{b+12}, v{PM}, v{b+14}\nv_and_b32 v{b+13}, v{PM+1}, v{b+15}"))
each(lambda b, i: a(f"v_xor_b32 v{b+14}, v{b+12}, v{b+14}\nv_xor_b32 v{b+15}, v{b+13}, v{b+15}"))
for i, (h, t) in enumerate(combos):
    b = SB(i)
    a(f"v_mfma_f32_16x16x32_bf16 {vr(b)}, {vr(VP + 8*h + 2*t)}, {vr(b+12)}, 0")
    a(f"v_mfma_f32_16x16x32_bf16 {vr(b+4)}, {vr(VP + 16 + 2*t)}, {vr(b+12)}, 0")
OP = 128
a(f"""s_mul_i32 s64, s{sSEG}, 11
s_mul_i32 s65, s{sW4}, 3
s_add_u32 s64, s64, s65
s_lshl_b32 s65, s{sPAR}, 6
s_add_u32 s65, s65, s64
s_mul_i32 s65, s65, 20480
s_lshl_b32 s66, s{sHP}, 10
s_add_u32 s66, s66, s65
s_lshl_b32 s67, s{sHP}, 8
s_add_u32 s67, s67, s65
s_add_u32 s67, s67, {16384}""")
for k, t in enumerate((2, 1, 0)):
    b0, b1 = SB(2*k), SB(2*k + 1); o = OP + 8*k
    cvt(o, b0); cvt(o+1, b0+2); cvt(o+2, b1); cvt(o+3, b1+2)
    cvt(o+4, b0+4); cvt(o+5, b0+6); cvt(o+6, b1+4); cvt(o+7, b1+6)
    a(f"""v_cndmask_b32 v{o+4}, v{o+6}, v{o+4}, s[60:61]
    v_cndmask_b32 v{o+5}, v{o+7}, v{o+5}, s[60:61]""")
    ls = a.label("L_nost")
    if t == 0:
        a(f"s_cmp_eq_u32 s{sW4}, 0\ns_cbranch_scc1 {ls}")
    a(f"s_cmp_gt_u32 s64, {64 - t}\ns_cbranch_scc1 {ls}")
    d = (t - 1) * 20480
    a(f"""s_add_i32 s68, s66, {d}
    s_add_i32 s69, s67, {d}
    buffer_store_dwordx4 {vr(o)}, v{vOM}, {srdr(SRD_WS)}, s68 offen sc1
    s_mov_b32 exec_hi, 0
    buffer_store_dwordx2 {vr(o+4, 2)}, v{vOX}, {srdr(SRD_WS)}, s69 offen sc1
    s_mov_b32 exec_hi, -1
    {ls}:""")
stamp(4)
a("s_barrier\ns_waitcnt vmcnt(0)")
check_dbg(9, 30)
a(f"""s_lshl_b32 s60, s{sTG}, 2
s_add_u32 s60, s60, s{sW4}
s_lshl_b32 s60, s60, 4
s_add_u32 s60, s60, s{sHP}
s_lshl_b32 s60, s60, 7
s_add_u32 s60, s60, {FLAG_O}
v_mov_b32 v31, 1
s_mov_b64 exec, 1
buffer_store_dword v31, v30, {srdr(SRD_WS)}, s60 offen sc1
s_mov_b64 exec, -1""")
stamp(5)
finish()

a("L_B:")
MF = 96; SQ = 72; BA = 56; UF = 24
sC = [60, 61, 62, 63]
sU = [64, 65, 66, 67]
sNU, sARR0, sARR1 = 68, 3, 18
a(f"""s_sub_u32 s60, s{sI}, 24
s_lshl_b32 s{sS2}, s{sXCD}, 3
s_add_u32 s{sS2}, s{sS2}, s60""")
vFA = [10, 11]; vFW = [12, 13]
for k in range(2):
    a(f"""s_lshl_b32 s60, s{sWAVE}, 6
    s_add_u32 s60, s60, {512*k}
    v_add_u32 v1, s60, v0
    v_mul_u32_u24 v2, 3277, v1
    v_lshrrev_b32 v2, 16, v2
    v_mul_u32_u24 v3, 20, v2
    v_sub_u32 v3, v1, v3
    v_lshl_add_u32 v4, v2, 6, s{sS2}
    v_mul_u32_u24 v4, 1280, v4
    v_lshl_add_u32 v{vFA[k]}, v3, 4, v4
    v_lshrrev_b32 v4, 4, v2
    v_mul_u32_u24 v4, 5, v4
    v_lshrrev_b32 v5, 2, v3
    v_add_u32 v4, v4, v5
    v_lshlrev_b32 v4, 10, v4
    v_and_b32 v6, 3, v3
    v_lshl_add_u32 v4, v6, 8, v4
    v_and_b32 v5, 1, v5
    v_mul_u32_u24 v5, 12, v5
    v_or_b32 v5, v5, v6
    v_and_b32 v2, 15, v2
    v_xor_b32 v2, v2, v5
    v_lshl_add_u32 v4, v2, 4, v4
    v_add_u32 v{vFW[k]}, {UB}, v4""")
a("s_waitcnt lgkmcnt(0)")
srd(a, SRD_BX, 10, 2048*640*2)
stamp(1)
for j in range(4): a(f"buffer_load_dwordx4 {vr(UF+4*j)}, v{vFA[0]}, {srdr(SRD_BX)}, 0 offen offset:{320*j}")
a(f"s_cmp_ge_u32 s{sWAVE}, 2\ns_cbranch_scc1 L_B_ld1")
for j in range(4): a(f"buffer_load_dwordx4 {vr(UF+16+4*j)}, v{vFA[1]}, {srdr(SRD_BX)}, 0 offen offset:{320*j}")
a("L_B_ld1:")
all_srds(skip=(SRD_BX, SRD_X, SRD_W))
a(f"s_cmp_ge_u32 s{sWAVE}, 4\ns_cbranch_scc1 L_B_light")
a(f"""s_and_b32 s69, s{sWAVE}, 1
s_lshl_b32 s19, s69, 1
s_add_u32 s19, s19, 1
s_lshr_b32 s3, s{sWAVE}, 1
s_sub_u32 s{sNU}, 3, s3
s_mul_i32 s3, s3, 3""")
for k in range(4):
    a(f"""s_add_u32 s18, s3, {k}
    s_lshl_b32 s{sC[k]}, s18, 6
    s_add_u32 s{sC[k]}, s{sC[k]}, s19
    s_lshl_b32 s{sU[k]}, s18, 11
    s_mul_i32 s18, s19, 10240
    s_add_u32 s{sU[k]}, s{sU[k]}, s18""")
a(f"""s_mul_i32 s69, s69, 10240
s_add_u32 s{sARR0}, s69, {3*10240}
s_sub_u32 s{sARR1}, {4*10240}, s69
s_branch L_B_par""")
a("L_B_light:")
a(f"""s_lshl_b32 s3, s{sW4}, 2
s_sub_u32 s3, s3, 1
s_max_i32 s3, s3, 0
s_cmp_eq_u32 s{sW4}, 0
s_cselect_b32 s{sNU}, 3, 4""")
for k in range(4):
    a(f"""s_add_u32 s18, s3, {k}
    s_mul_i32 s19, s18, 52
    s_lshr_b32 s19, s19, 8
    s_mul_i32 s69, s19, 5
    s_sub_u32 s18, s18, s69
    s_lshl_b32 s69, s19, 2
    s_cmp_eq_u32 s19, 2
    s_cselect_b32 s19, 2, s69
    s_lshl_b32 s{sC[k]}, s18, 6
    s_add_u32 s{sC[k]}, s{sC[k]}, s19
    s_lshl_b32 s{sU[k]}, s18, 11
    s_mul_i32 s18, s19, 10240
    s_add_u32 s{sU[k]}, s{sU[k]}, s18""")
a("L_B_par:")
a(f"""v_and_b32 v14, 15, v0
v_lshrrev_b32 v15, 4, v0
v_lshlrev_b32 v1, 3, v15
v_cvt_f32_u32 v16, v1""")
for k in range(4):
    if k >= 2: a(f"s_cmp_le_u32 s{sNU}, {k}\ns_cbranch_scc1 L_B_gen")
    a(f"""v_lshl_add_u32 v1, v14, 2, s{sC[k]}
    v_cvt_f32_u32 v1, v1
    v_mul_f32 v1, {f2h(1/640)}, v1
    v_mul_f32 v2, v1, v16""")
    for ks in range(5):
        R = MF + 40*k + 8*ks; I = R + 4
        for i2 in range(4):
            n0 = 32*ks + 2*i2
            a(f"""v_fmamk_f32 v3, v1, {f2h(n0)}, v2
            v_fmamk_f32 v4, v1, {f2h(n0+1)}, v2
            v_cos_f32 v5, v3
            v_cos_f32 v6, v4
            v_sin_f32 v7, -v3
            v_sin_f32 v8, -v4
            v_cvt_pk_bf16_f32 v{R+i2}, v5, v6
            v_cvt_pk_bf16_f32 v{I+i2}, v7, v8""")
a("L_B_gen:")
a(f"""v_lshl_add_u32 v1, v15, 8, s{sS2}
v_cvt_f32_u32 v1, v1""")
for tt in range(2):
    a(f"""v_add_u32 v2, {16*tt}, v14
    v_cvt_f32_u32 v2, v2
    v_mul_f32 v2, {f2h(1/2048)}, v2
    v_mul_f32 v9, v2, v1""")
    for i2 in range(4):
        n0 = 64 * ((2*i2) % 4 + 16 * (i2 >> 1))
        a(f"""v_fmamk_f32 v3, v2, {f2h(n0)}, v9
        v_fmamk_f32 v4, v2, {f2h(n0+64)}, v9
        v_cos_f32 v5, v3
        v_cos_f32 v6, v4
        v_sin_f32 v7, v3
        v_sin_f32 v8, v4
        v_cvt_pk_bf16_f32 v{SQ+12*tt+i2}, v5, v6
        v_cvt_pk_bf16_f32 v{SQ+12*tt+4+i2}, v7, v8
        v_xor_b32 v{SQ+12*tt+8+i2}, 0x80008000, v{SQ+12*tt+4+i2}""")
stamp(2)
def fold(src, vw):
    for k in range(4):
        for j in range(4):
            a(f"v_lshlrev_b32 v{2+2*j}, 16, v{src+4*j+k}\nv_and_b32 v{3+2*j}, 0xffff0000, v{src+4*j+k}")
        a("""v_pk_add_f32 v[16:17], v[2:3], v[6:7]
        v_pk_add_f32 v[2:3], v[2:3], v[6:7] neg_lo:[0,1] neg_hi:[0,1]
        v_pk_add_f32 v[18:19], v[4:5], v[8:9]
        v_pk_add_f32 v[4:5], v[4:5], v[8:9] neg_lo:[0,1] neg_hi:[0,1]
        v_pk_add_f32 v[6:7], v[16:17], v[18:19]
        v_pk_add_f32 v[8:9], v[16:17], v[18:19] neg_lo:[0,1] neg_hi:[0,1]""")
        a(f"""v_cvt_pk_bf16_f32 v{BA+8+k}, v2, v3
        v_cvt_pk_bf16_f32 v{BA+12+k}, v4, v5
        v_cvt_pk_bf16_f32 v{BA+k}, v6, v7
        v_cvt_pk_bf16_f32 v{BA+4+k}, v8, v9
        v_xor_b32 v{20+k}, 0x80008000, v{BA+12+k}""")
    for j in range(4): a(f"ds_write_b128 v{vw}, {vr(BA+4*j)} offset:{10240*j}")
    a(f"ds_write_b128 v{vw}, {vr(20)} offset:{10240*4}")
a("s_waitcnt vmcnt(0)")
fold(UF, vFW[0])
a(f"s_cmp_ge_u32 s{sWAVE}, 2\ns_cbranch_scc1 L_B_f1\ns_waitcnt lgkmcnt(0)")
fold(UF + 16, vFW[1])
a("L_B_f1:")
vRA = [10, 11]; vUS = 12
a(f"""v_xor_b32 v1, v14, v15
v_lshlrev_b32 v1, 4, v1
v_lshl_add_u32 v1, v15, 8, v1
v_add_u32 v{vRA[0]}, {UB}, v1
v_xor_b32 v{vRA[1]}, {12*16}, v{vRA[0]}
v_lshlrev_b32 v1, 4, v15
v_lshl_add_u32 v{vUS}, v14, 6, v1
s_mul_i32 s19, s{sS2}, 51200
s_add_u32 s19, s19, {U_OFF}
v_add_u32 v{vUS}, s19, v{vUS}
s_waitcnt lgkmcnt(0)
s_barrier""")
stamp(3)
def seq32(k):
    pa, pb = 16, 20
    for j in range(4): cvt(pa + j, BA + 2*j)
    for j in range(4): cvt(pb + j, BA + 8 + 2*j)
    for tt in range(2):
        C, S, N = (vr(SQ + 12*tt + 4*j) for j in range(3))
        re, im = BA + 8*tt, BA + 8*tt + 4
        a(f"v_mfma_f32_16x16x32_bf16 {vr(re)}, {vr(pa)}, {C}, 0")
        a(f"v_mfma_f32_16x16x32_bf16 {vr(im)}, {vr(pb)}, {C}, 0")
        a(f"v_mfma_f32_16x16x32_bf16 {vr(re)}, {vr(pb)}, {S}, {vr(re)}")
        a(f"v_mfma_f32_16x16x32_bf16 {vr(im)}, {vr(pa)}, {N}, {vr(im)}")
    for tt in range(2):
        for j in range(4): cvt(2 + 4*tt + j, BA + 8*tt + 2*j)
        a(f"buffer_store_dwordx4 {vr(2 + 4*tt)}, v{vUS}, {srdr(SRD_WS)}, s{sU[k]} offen offset:{1024*tt} sc1")
a(f"s_cmp_ge_u32 s{sWAVE}, 4\ns_cbranch_scc1 L_B_lu")
vQA = [13, 14]; vQB = [15, 1]
a(f"""v_add_u32 v{vQA[0]}, s{sARR0}, v{vRA[0]}
v_add_u32 v{vQA[1]}, s{sARR0}, v{vRA[1]}
v_add_u32 v{vQB[0]}, s{sARR1}, v{vRA[0]}
v_add_u32 v{vQB[1]}, s{sARR1}, v{vRA[1]}""")
for k in range(3):
    if k == 2: a(f"s_cmp_le_u32 s{sNU}, 2\ns_cbranch_scc1 L_B_done")
    Q = LdsQ()
    steps = [(ks, rt) for ks in range(5) for rt in range(2)]
    def rd(j):
        ks, rt = steps[j]; o = (rt*5 + ks) * 1024; b = UF + 12*(j % 2)
        return [(f"ds_read_b128 {vr(b)}, v{vRA[ks&1]} offset:{o + 2*10240}", j), (f"ds_read_b128 {vr(b+4)}, v{vQA[ks&1]} offset:{o}", j),
                (f"ds_read_b128 {vr(b+8)}, v{vQB[ks&1]} offset:{o}", j)]
    for i, tg in rd(0) + rd(1): Q.issue(i, tg)
    for j, (ks, rt) in enumerate(steps):
        Q.need({j})
        b = UF + 12*(j % 2); R = vr(MF + 40*k + 8*ks); I = vr(MF + 40*k + 8*ks + 4)
        A_, B_ = BA + 4*rt, BA + 8 + 4*rt
        a(f"v_mfma_f32_16x16x32_bf16 {vr(A_)}, {vr(b)}, {R}, {'0' if ks == 0 else vr(A_)}")
        a(f"v_mfma_f32_16x16x32_bf16 {vr(B_)}, {vr(b)}, {I}, {'0' if ks == 0 else vr(B_)}")
        a(f"v_mfma_f32_16x16x32_bf16 {vr(A_)}, {vr(b+4)}, {I}, {vr(A_)}")
        a(f"v_mfma_f32_16x16x32_bf16 {vr(B_)}, {vr(b+8)}, {R}, {vr(B_)}")
        if j + 2 < 10:
            for i, tg in rd(j + 2): Q.issue(i, tg)
    seq32(k)
a("s_branch L_B_done")
a("L_B_lu:")
wo_setup()
a(f"s_lshl_b32 s{sM0WO+3}, s{sW4}, 10")
sM0WO_save = sM0WO
sM0WO = 69
for d in wo_dma(list(range(0, 100, 4))): a(d)
sM0WO = sM0WO_save
for k in range(4):
    if k == 3: a(f"s_cmp_le_u32 s{sNU}, 3\ns_cbranch_scc1 L_B_done")
    a(f"""s_cmp_ge_u32 s{sU[k]}, {3*10240}
    s_cselect_b32 s18, 0, 10240
    s_cmp_lt_u32 s{sU[k]}, {2*10240}
    s_cselect_b32 s18, 0, s18
    v_add_u32 v13, s18, v{vRA[0]}
    v_add_u32 v14, s18, v{vRA[1]}""")
    Q = LdsQ()
    steps = [(ks, rt) for ks in range(5) for rt in range(2)]
    LB = UF + 4
    def rd(j):
        ks, rt = steps[j]
        return (f"ds_read_b128 {vr(LB + 4*(j % 4))}, v{13 + (ks&1)} offset:{(rt*5 + ks) * 1024}", j)
    for j in range(4): Q.issue(*rd(j))
    for j, (ks, rt) in enumerate(steps):
        Q.need({j})
        b = LB + 4*(j % 4); R = vr(MF + 40*k + 8*ks); I = vr(MF + 40*k + 8*ks + 4)
        A_, B_ = BA + 4*rt, BA + 8 + 4*rt
        a(f"v_mfma_f32_16x16x32_bf16 {vr(A_)}, {vr(b)}, {R}, {'0' if ks == 0 else vr(A_)}")
        a(f"v_mfma_f32_16x16x32_bf16 {vr(B_)}, {vr(b)}, {I}, {'0' if ks == 0 else vr(B_)}")
        if j + 4 < 10: Q.issue(*rd(j + 4))
    seq32(k)
a("L_B_done:")
stamp(4)
a(f"""v_mov_b32 v1, 0
buffer_load_dword v2, v1, {srdr(SRD_DBG)}, 0 offen sc1
s_waitcnt vmcnt(0)""")
check_dbg(2, 1)
a(f"""s_barrier
s_cmp_ge_u32 s{sWAVE}, 4
s_cbranch_scc1 L_A2
s_cmp_lg_u32 s{sWAVE}, 0
s_cbranch_scc1 L_B_noflag
s_lshl_b32 s60, s{sS2}, 7
s_add_u32 s60, s60, {FLAG_U}
v_mov_b32 v2, 1
s_mov_b64 exec, 1
buffer_store_dword v2, v1, {srdr(SRD_WS)}, s60 offen sc1
s_mov_b64 exec, -1
L_B_noflag:""")
stamp(5)
sT1, sTT = 64, 65
a(f"""s_lshr_b32 s{sT1}, s{sS2}, 1
s_and_b32 s60, s{sS2}, 1
s_mul_i32 s{sTT}, s60, 3
s_add_u32 s{sTT}, s{sTT}, s{sWAVE}
s_sub_u32 s60, 3, s60
s_cmp_ge_u32 s{sWAVE}, s60
s_cbranch_scc1 L_fin""")
BF = 16; YA = 80; AF = 160
vUA = list(range(200, 205)); vTR = [205, 206]; vOD, vOR = 207, 208
a(f"""s_lshl_b32 s60, s{sTT}, 11
s_lshl_b32 s61, s{sT1}, 6
s_add_u32 s60, s60, s61
s_add_u32 s60, s60, {U_OFF}
s_mov_b32 s61, 51200""")
for b in range(5):
    a(f"""v_add_u32 v1, {64*b}, v0
    v_mul_u32_u24 v2, 3277, v1
    v_lshrrev_b32 v2, 16, v2
    v_mul_u32_u24 v3, 20, v2
    v_sub_u32 v3, v1, v3
    v_mul_u32_u24 v2, s61, v2
    v_lshrrev_b32 v4, 2, v3
    v_mul_u32_u24 v4, 10240, v4
    v_and_b32 v3, 3, v3
    v_lshl_add_u32 v3, v3, 4, v4
    v_add3_u32 v{vUA[b]}, v2, v3, s60""")
a(f"""v_and_b32 v14, 15, v0
v_lshrrev_b32 v15, 4, v0
v_bfe_u32 v1, v0, 2, 2
v_lshl_add_u32 v1, v15, 2, v1
v_mul_u32_u24 v1, 320, v1
v_and_b32 v2, 3, v0
v_lshl_add_u32 v1, v2, 4, v1
v_and_b32 v13, 1, v15
v_lshl_add_u32 v1, v13, 3, v1
s_mul_i32 s66, s{sWAVE}, 20480
s_add_u32 s66, s66, {B2L}
v_add_u32 v{vTR[0]}, s66, v1
v_xor_b32 v{vTR[1]}, 8, v{vTR[0]}
v_lshl_add_u32 v1, v14, 5, s{sT1}
v_mul_u32_u24 v2, 2560, v1
s_lshl_b32 s60, s{sTT}, 7
v_lshl_add_u32 v3, v15, 5, s60
v_add3_u32 v{vOD}, v2, v3, 64
v_add_u32 v{vOD}, {1280-64}, v{vOD}
v_sub_u32 v{vOR}, {1280+1248}, v3
v_cvt_f32_u32 v13, v13
v_mul_f32 v13, -0.25, v13
v_sub_f32 v12, -0.25, v13
v_lshlrev_b32 v2, 2, v15
v_cvt_f32_u32 v11, v2""".replace("-0.25", f2h(-0.25)))
for tt in range(4):
    a(f"""v_add_u32 v2, {16*tt}, v14
    v_cvt_f32_u32 v2, v2
    v_mul_f32 v2, {f2h(1/64)}, v2
    v_fma_f32 v9, v2, v11, v13
    v_fma_f32 v10, v2, v11, v12""")
    for ks in range(4):
        for i2 in range(2):
            n0 = 16*ks + 2*i2
            a(f"""v_fmamk_f32 v3, v2, {f2h(n0)}, v9
            v_fmamk_f32 v4, v2, {f2h(n0+1)}, v9
            v_fmamk_f32 v5, v2, {f2h(n0)}, v10
            v_fmamk_f32 v6, v2, {f2h(n0+1)}, v10
            v_cos_f32 v3, v3
            v_cos_f32 v4, v4
            v_cos_f32 v5, v5
            v_cos_f32 v6, v6
            v_cvt_pk_bf16_f32 v{BF+16*tt+4*ks+i2}, v3, v4
            v_cvt_pk_bf16_f32 v{BF+16*tt+4*ks+2+i2}, v5, v6""")
stamp(6)
a(f"v_lshlrev_b32 v2, 7, v0\ns_mov_b32 s60, {FLAG_U}")
poll_flags(2, 60, 3)
stamp(7)
for n in range(20):
    a(f"s_add_u32 m0, s66, {1024*n}\ns_mov_b32 s63, {(n//5)*16*51200}\nbuffer_load_dwordx4 v{vUA[n%5]}, {srdr(SRD_WS)}, s63 offen sc1 lds")
Q = LdsQ()
steps = [(ks, c) for ks in range(4) for c in range(5)]
def rdU(j):
    ks, c = steps[j]; b = AF + 4*(j % 10); o = ks*5120 + c*64
    return [(f"ds_read_b64_tr_b16 {vr(b, 2)}, v{vTR[0]} offset:{o}", j), (f"ds_read_b64_tr_b16 {vr(b+2, 2)}, v{vTR[1]} offset:{o}", j)]
a("s_waitcnt vmcnt(15)")
for j in range(5):
    for i, tg in rdU(j): Q.issue(i, tg)
for j, (ks, c) in enumerate(steps):
    if c == 0 and ks < 3:
        a(f"s_waitcnt vmcnt({10 - 5*ks})")
    Q.need({j})
    if j + 5 < 20:
        for i, tg in rdU(j + 5): Q.put(i, tg)
    for tt in range(4):
        d = YA + 16*c + 4*tt
        a(f"v_mfma_f32_16x16x32_bf16 {vr(d)}, {vr(AF + 4*(j % 10))}, {vr(BF+16*tt+4*ks)}, {'0' if ks == 0 else vr(d)}")
        Q.pop(1)
stamp(8)
for tt in range(4):
    y = lambda c, r: YA + 16*c + 4*tt + r
    P = AF + 16*(tt & 1)
    for r in range(4):
        a(f"v_cvt_pk_bf16_f32 v{P+2*r}, v{y(0,r)}, v{y(1,r)}\nv_cvt_pk_bf16_f32 v{P+2*r+1}, v{y(2,r)}, v{y(3,r)}")
    a(f"""s_mov_b32 s60, {tt*512*2560}
    buffer_store_dwordx4 {vr(P)}, v{vOD}, {srdr(SRD_OUT)}, s60 offen
    buffer_store_dwordx4 {vr(P+4)}, v{vOD}, {srdr(SRD_OUT)}, s60 offen offset:16""")
    for r in range(4):
        a(f"v_cvt_pk_bf16_f32 v{P+8+2*r}, v{y(4,3-r)}, v{y(3,3-r)}\nv_cvt_pk_bf16_f32 v{P+8+2*r+1}, v{y(2,3-r)}, v{y(1,3-r)}")
    a(f"""v_sub_u32 v2, {2048 - 512*tt}, v1
    v_and_b32 v2, 2047, v2
    v_mul_u32_u24 v2, 2560, v2
    v_add_u32 v2, v2, v{vOR}
    buffer_store_dwordx4 {vr(P+8)}, v2, {srdr(SRD_OUT)}, 0 offen
    buffer_store_dwordx4 {vr(P+12)}, v2, {srdr(SRD_OUT)}, 0 offen offset:16""")
stamp(9)
a("L_fin:")
finish()

a("L_A2:")
OF = 16; OA = 96; WOF = 116
NB = opt("a2nb", 25)
vWM = [4, 5]; vWX = [6, 7]; vO, vFL, vOUT = 8, 9, 10
sTILE = 60
a(f"""v_lshrrev_b32 v15, 4, v0
v_bfe_u32 v1, v0, 2, 2
v_and_b32 v2, 3, v0
v_lshlrev_b32 v2, 3, v2
v_lshl_add_u32 v3, v15, 2, v1
v_mul_u32_u24 v3, 160, v3
v_add_u32 v{vWM[0]}, v3, v2
v_add_u32 v{vWM[1]}, 51200, v{vWM[0]}
v_mul_u32_u24 v3, 40, v15
v_and_b32 v14, 1, v15
v_mul_u32_u24 v14, 20, v14
v_add3_u32 v3, v3, v1, v14
v_mul_u32_u24 v3, 160, v3
v_add_u32 v{vWX[0]}, v3, v2
v_mul_u32_u24 v14, 320, v14
v_sub_u32 v{vWX[1]}, v{vWX[0]}, v14
v_add_u32 v{vWX[1]}, 3200, v{vWX[1]}""")
steps = [(f, T) for f in range(20) for T in range(5)]
def rdO(j):
    f, T = steps[j]; b = WOF + 4*(j % NB)
    if f < 16:
        v = vWM[f >> 3]; o = (f & 7)*6400 + 32*T
        return [(f"ds_read_b64_tr_b16 {vr(b, 2)}, v{v} offset:{o}", j), (f"ds_read_b64_tr_b16 {vr(b+2, 2)}, v{v} offset:{o + 3200}", j)]
    jx = f - 16; o = jx*25600 + 2560 + 32*T
    if jx == 2 and T == 0: pre = [(f"v_add_u32 v{vWX[0]}, 51200, v{vWX[0]}\nv_add_u32 v{vWX[1]}, 51200, v{vWX[1]}", None)]
    else: pre = []
    if jx >= 2: o -= 51200
    return pre + [(f"ds_read_b64_tr_b16 {vr(b, 2)}, v{vWX[0]} offset:{o}", j), (f"ds_read_b64_tr_b16 {vr(b+2, 2)}, v{vWX[1]} offset:{o}", j)]
class LdsQ2(LdsQ):
    def issue(self, instr, tag):
        a(instr)
        if tag is not None: self.q.append(tag)
Q = LdsQ2()
for j in range(NB):
    for i, tg in rdO(j): Q.issue(i, tg)
a(f"""s_and_b32 s61, s{sTGRP}, 15
s_lshl_b32 s61, s61, 2
s_add_u32 s{sTILE}, s61, s{sW4}
s_lshr_b32 s62, s{sTGRP}, 4
s_mul_i32 s63, s{sTILE}, 373
s_lshr_b32 s63, s63, 12
s_mul_i32 s64, s63, 11
s_sub_u32 s64, s{sTILE}, s64
s_add_u32 s64, s64, 1
s_mul_i32 s64, s64, 86
s_lshr_b32 s64, s64, 8
s_lshl_b32 s63, s63, 1
s_add_u32 s63, s63, s62
s_lshl_b32 s63, s63, 2
s_add_u32 s63, s63, s64
s_lshl_b32 s63, s63, 11
s_add_u32 s63, s63, {FLAG_O}
s_lshl_b32 s64, s62, 6
s_add_u32 s64, s64, s{sTILE}
s_mul_i32 s64, s64, 20480
v_and_b32 v14, 15, v0
v_lshlrev_b32 v{vFL}, 7, v14
v_lshlrev_b32 v{vO}, 4, v0
s_lshl_b32 s65, s{sTILE}, 5
s_add_u32 s65, s65, s62
v_lshl_add_u32 v1, v14, 1, s65
v_mul_u32_u24 v1, 2560, v1
s_mul_i32 s65, s{sCG}, 160
v_and_b32 v2, 1, v15
v_lshlrev_b32 v2, 5, v2
v_lshrrev_b32 v3, 1, v15
v_lshl_add_u32 v2, v3, 4, v2
v_add3_u32 v{vOUT}, v1, v2, s65
v_lshl_add_u32 v2, v15, 3, s65
v_add_u32 v{vOUT+1}, v1, v2""")
stamp(6)
poll_flags(vFL, 63, 1)
stamp(7)
for f in range(20):
    a(f"buffer_load_dwordx4 {vr(OF+4*f)}, v{vO}, {srdr(SRD_WS)}, s64 offen offset:{1024*(f%4)} sc1")
    if f % 4 == 3: a("s_add_u32 s64, s64, 4096")
for j, (f, T) in enumerate(steps):
    if T == 0: a(f"s_waitcnt vmcnt({19-f})")
    Q.need({j})
    a(f"v_mfma_f32_16x16x32_bf16 {vr(OA+4*T)}, {vr(WOF+4*(j % NB))}, {vr(OF+4*f)}, {'0' if f == 0 else vr(OA+4*T)}")
    if j + NB < 100:
        for i, tg in rdO(j + NB): Q.issue(i, tg)
stamp(8)
for T in range(5):
    cvt(OF + 2*T, OA + 4*T); cvt(OF + 2*T + 1, OA + 4*T + 2)
for p in range(2):
    a(f"v_permlane16_swap_b32 v{OF+4*p}, v{OF+4*p+2}\nv_permlane16_swap_b32 v{OF+4*p+1}, v{OF+4*p+3}")
a(f"""buffer_store_dwordx2 {vr(OF+8, 2)}, v{vOUT+1}, {srdr(SRD_OUT)}, 0 offen offset:128
buffer_store_dwordx4 {vr(OF)}, v{vOUT}, {srdr(SRD_OUT)}, 0 offen
buffer_store_dwordx4 {vr(OF+4)}, v{vOUT}, {srdr(SRD_OUT)}, 0 offen offset:64""")
stamp(9)
finish()

if STAMP:
    a("L_stampout:")
    a("s_waitcnt vmcnt(0)")
    stamp(10)
    a(f"s_memrealtime s[{sSTAMP+24}:{sSTAMP+25}]")
    a(f"""s_waitcnt lgkmcnt(0)
    s_lshl_b32 s60, s2, 3
    s_add_u32 s60, s60, s{sWAVE}
    s_lshl_b32 s60, s60, 7
    s_add_u32 s60, s60, {STAMP_OFF}
    v_mov_b32 v1, s60""")
    for i in range(14): a(f"v_mov_b32 v{4+i}, s{sSTAMP+2*i}")
    a("s_mov_b64 exec, 1")
    for k in range(4): a(f"buffer_store_dwordx4 {vr(4+4*k)}, v1, {srdr(SRD_WS)}, 0 offen offset:{16*k}")
a("L_end:\ns_endpgm")

pre = open("concat_heads__sliding_local_dilated__spectral_fnet__prompt.s.ref").read().split("; Override")[0]
txt = a.text(fix=True)
open(out, "w").write(header(256, 512, 163840, pre=pre) + txt + footer(nv=256, acc=256))
print(f"{out}: {len(txt.splitlines())} lines, nops added {a.nops_added}", file=sys.stderr)
```
